```python
import torch

def _softmax(x, axis=-1):
    return torch.softmax(x, dim=axis)
def _gelu(x):
    return torch.nn.functional.gelu(x, approximate="tanh")
def _silu(x):
    return torch.nn.functional.silu(x)
def _sigmoid(x):
    return torch.sigmoid(x)
def _layernorm(x, axis=-1, eps=1e-5):
    m = x.mean(dim=axis, keepdim=True)
    v = x.var(dim=axis, keepdim=True, unbiased=False)
    return (x - m) / torch.sqrt(v + eps)
def _scatter_add(tgt, idx, src, axis=0):
    return tgt.clone().index_add_(axis, idx, src)
def _segment_sum(src, seg, n):
    out = torch.zeros((n,) + src.shape[1:], dtype=src.dtype)
    return out.index_add_(0, seg, src)
def _pad(x, pw):
    flat = tuple(v for pair in reversed(pw) for v in pair)
    return torch.nn.functional.pad(x, flat)

kernel_name = 'standalone__paged_block_table_kv_radixattention__decode'

def setup_inputs():

    _w = (lambda a: (lambda t: t.to(torch.bfloat16) if t.is_floating_point() else t)(torch.as_tensor(a)))
    B, H, Hkv, Dh = 2, 32, 4, 128
    Lk = 32768
    bs = 16
    nb = max(2, Lk // bs)
    P = max(1, nb // 2)
    n_phys = P + B * (nb - P)
    shared = torch.arange(P, dtype=torch.int64)
    priv = P + torch.arange(B * (nb - P), dtype=torch.int64).reshape(B, nb - P)
    bt = torch.cat([torch.tile(shared[None, :], (B, 1)), priv], dim=1)
    ctx = nb * bs - (torch.arange(1, B + 1, dtype=torch.int64) * 2654435761) % max(1, (nb * bs - P * bs) // 2)
    return {
        "q": _w((lambda *s: torch.randn(*s, dtype=torch.bfloat16) * 0.8)(B, H, Dh)),
        "k_cache": _w((lambda *s: torch.randn(*s, dtype=torch.bfloat16) * 0.8)(n_phys, bs, Hkv, Dh)),
        "v_cache": _w((lambda *s: torch.randn(*s, dtype=torch.bfloat16) * 0.05)(n_phys, bs, Hkv, Dh)),
        "block_table": _w(bt.to(torch.int64)),
        "ctx_lens": _w(torch.as_tensor(ctx).to(torch.int64)),
    }

def reference(q, k_cache, v_cache, block_table, ctx_lens):
    B, H, Dh = q.shape
    n_phys, bs, Hkv, _ = k_cache.shape
    nb = block_table.shape[1]
    Lk = nb * bs
    rep = H // Hkv
    k = k_cache[block_table].reshape(B, Lk, Hkv, Dh)
    v = v_cache[block_table].reshape(B, Lk, Hkv, Dh)
    k = (lambda x, n, axis: torch.repeat_interleave(x, n, dim=axis))(k, rep, axis=2)
    v = (lambda x, n, axis: torch.repeat_interleave(x, n, dim=axis))(v, rep, axis=2)
    scores = torch.einsum("bhd,bkhd->bhk", q, k) * (Dh ** -0.5)
    pos = torch.arange(Lk)
    valid = pos[None, :] < ctx_lens[:, None]
    scores = torch.where(valid[:, None, :], scores, -1e9)
    p = _softmax(scores, axis=-1)
    return torch.einsum("bhk,bkhd->bhd", p, v)
```

```python
import sys
import struct
import argparse

NAME = "standalone__paged_block_table_kv_radixattention__decode"
HEADER = open("cdna_kernels/%s.s.ref" % NAME).read().split("; Override launch")[0]

KV_BYTES = 3072 * 16384
LK = 32768
SCALE_LOG2E = (128 ** -0.5) * 1.4426950408889634
MBOX = 8704
STAMP_OFF = 8 << 20


def f2u(x):
    return struct.unpack("<I", struct.pack("<f", x))[0]


class Asm:
    def __init__(self):
        self.lines = []

    def __call__(self, s):
        for ln in s.strip("\n").split("\n"):
            ln = ln.strip()
            if ln.endswith(":"):
                self.lines.append(ln)
            else:
                self.lines.append("    " + ln)

    def text(self):
        return "\n".join(self.lines) + "\n"


def vr(a, n=1):
    return "v%d" % a if n == 1 else "v[%d:%d]" % (a, a + n - 1)


def sr(a, n=1):
    return "s%d" % a if n == 1 else "s[%d:%d]" % (a, a + n - 1)


def gen(D=4, kflags="nt", vflags="nt", stamps=False, stflags="", nocompute=False):
    a = Asm()
    NW = 4
    vL, vC, vG4, vShift, vKoff, vVoff, vInfo = 1, 2, 3, 4, 5, 6, 7
    vM, vMc, vLs, vNinf = 8, 9, 10, 11
    vS = 12
    vP = 16
    vT = 18
    vLim = 28
    vAl = 30
    vQ = 32
    vAcc = 48
    vA = 80
    vRing = 88
    nv = vRing + 32 * D
    sQ, sK, sV, sBt, sCtx, sOut, sDbg, sWs = 4, 6, 8, 10, 12, 14, 16, 18
    sSrdK, sSrdV = 20, 24
    sHead, sSlot, sW, sN, sI, sInfo, sOff = 28, 29, 30, 31, 32, 33, 34
    sC0, sC1 = 36, 37
    sMask = 38
    sM0 = 40
    sScale, sPlo, sPhi = 48, 49, 50
    sZ0, sZ1 = 51, 52
    sT = 54
    sMeta = 56
    sOffs = 64
    sStamp = 72

    def stamp(i):
        if stamps:
            a("s_memrealtime %s" % sr(sStamp + 2 * i, 2))

    a("%s_kernel:" % NAME)
    stamp(0)
    a("s_cmp_ge_u32 s2, 256")
    a("s_cbranch_scc1 L_end1")
    a("s_load_dwordx16 s[4:19], s[0:1], 0")
    a(f"""
    v_and_b32 {vr(vL)}, 63, v0
    v_lshrrev_b32 {vr(vT)}, 6, v0
    s_lshr_b32 {sr(sHead)}, s2, 3
    s_and_b32 {sr(sHead)}, {sr(sHead)}, 3
    v_readfirstlane_b32 {sr(sW)}, {vr(vT)}
    s_lshr_b32 {sr(sSlot)}, s2, 5
    s_lshl_b32 {sr(sSlot)}, {sr(sSlot)}, 3
    s_and_b32 {sr(sT)}, s2, 7
    s_or_b32 {sr(sSlot)}, {sr(sSlot)}, {sr(sT)}
    v_and_b32 {vr(vC)}, 15, v0
    v_bfe_u32 {vr(vT+3)}, v0, 4, 2
    v_lshlrev_b32 {vr(vG4)}, 2, {vr(vT+3)}
    v_and_b32 {vr(vShift)}, 8, v0
    v_lshrrev_b32 {vr(vT)}, 1, {vr(vL)}
    v_lshl_add_u32 {vr(vT)}, {vr(vT)}, 6, {sr(sSlot)}
    v_and_b32 {vr(vT+1)}, 1, v0
    v_lshlrev_b32 {vr(vT+2)}, 13, {vr(vT+1)}
    v_lshl_add_u32 {vr(vT+2)}, {vr(vT)}, 2, {vr(vT+2)}
    s_lshl_b32 {sr(sT)}, {sr(sHead)}, 8
    v_lshlrev_b32 {vr(vKoff)}, 10, {vr(vC)}
    v_lshl_add_u32 {vr(vKoff)}, {vr(vT+3)}, 4, {vr(vKoff)}
    v_add_u32 {vr(vKoff)}, {sr(sT)}, {vr(vKoff)}
    v_lshlrev_b32 {vr(vVoff)}, 12, {vr(vT+3)}
    v_lshl_add_u32 {vr(vVoff)}, {vr(vC)}, 4, {vr(vVoff)}
    v_add_u32 {vr(vVoff)}, {sr(sT)}, {vr(vVoff)}
    v_lshlrev_b32 {vr(vT+4)}, 10, {vr(vShift)}
    v_and_b32 {vr(vT+5)}, 7, v0
    v_lshl_add_u32 {vr(vT+4)}, {vr(vT+5)}, 8, {vr(vT+4)}
    v_lshl_add_u32 {vr(vT+4)}, {vr(vT+3)}, 4, {vr(vT+4)}
    s_lshl_b32 {sr(sT)}, {sr(sHead)}, 11
    v_add_u32 {vr(vT+4)}, {sr(sT)}, {vr(vT+4)}
    s_mov_b32 {sr(sSrdK+2)}, {KV_BYTES}
    s_mov_b32 {sr(sSrdK+3)}, 0x20000
    s_mov_b32 {sr(sSrdV+2)}, {KV_BYTES}
    s_mov_b32 {sr(sSrdV+3)}, 0x20000
    s_waitcnt lgkmcnt(0)
    """)
    stamp(1)
    a(f"""
    global_load_dword {vr(vInfo)}, {vr(vT+2)}, {sr(sBt,2)}
    s_load_dwordx2 {sr(sC0,2)}, {sr(sCtx,2)}, 0
    """)
    for kk in range(4):
        a(f"global_load_dwordx4 {vr(vQ+4*kk,4)}, {vr(vT+4)}, {sr(sQ,2)} offset:{64*kk}")
    a(f"""
    s_mov_b32 {sr(sSrdK)}, {sr(sK)}
    s_mov_b32 {sr(sSrdK+1)}, {sr(sK+1)}
    s_mov_b32 {sr(sSrdV)}, {sr(sV)}
    s_mov_b32 {sr(sSrdV+1)}, {sr(sV+1)}
    s_mov_b32 {sr(sScale)}, {f2u(SCALE_LOG2E):#x}
    s_mov_b32 {sr(sPlo)}, 0x05040100
    s_mov_b32 {sr(sPhi)}, 0x07060302
    v_mov_b32 {vr(vM)}, {f2u(-1e30):#x}
    v_mul_f32 {vr(vMc)}, {sr(sScale)}, {vr(vM)}
    v_mov_b32 {vr(vLs)}, 0
    v_mov_b32 {vr(vNinf)}, 0xff800000
    v_cmp_eq_u32 {sr(sM0,2)}, 1, {vr(vT+1)}
    v_lshlrev_b32 {vr(vT)}, 4, {vr(vT)}
    """)
    for i in range(32):
        a(f"v_mov_b32 {vr(vAcc+i)}, 0")
    a("s_waitcnt lgkmcnt(0)")
    for c, z in ((sC0, sZ0), (sC1, sZ1)):
        a(f"""
        s_cmp_lt_i32 {sr(c)}, 1
        s_cselect_b32 {sr(z)}, 0, -1
        s_cselect_b32 {sr(c)}, {LK}, {sr(c)}
        """)
    a(f"""
    v_mov_b32 {vr(vT+2)}, {sr(sC0)}
    v_mov_b32 {vr(vT+3)}, {sr(sC1)}
    v_cndmask_b32 {vr(vT+2)}, {vr(vT+2)}, {vr(vT+3)}, {sr(sM0,2)}
    v_sub_u32 {vr(vT+2)}, {vr(vT+2)}, {vr(vT)}
    v_med3_i32 {vr(vT+2)}, {vr(vT+2)}, 0, 16
    s_nop 1
    v_mov_b32_dpp {vr(vT+3)}, {vr(vT+2)} quad_perm:[1,0,3,2] row_mask:0xf bank_mask:0xf
    s_waitcnt vmcnt(4)
    s_nop 1
    v_mov_b32_dpp {vr(vT+5)}, {vr(vInfo)} quad_perm:[1,0,3,2] row_mask:0xf bank_mask:0xf
    v_cmp_eq_u32 vcc, {vr(vT+5)}, {vr(vInfo)}
    s_nop 1
    v_cndmask_b32 {vr(vT+3)}, 0, {vr(vT+3)}, vcc
    v_lshl_or_b32 {vr(vT+3)}, {vr(vT+3)}, 8, {vr(vT+2)}
    v_cndmask_b32 {vr(vT+5)}, {vr(vT+2)}, 0, vcc
    v_lshlrev_b32 {vr(vT+5)}, 8, {vr(vT+5)}
    v_cndmask_b32 {vr(vT+3)}, {vr(vT+3)}, {vr(vT+5)}, {sr(sM0,2)}
    v_cmp_ne_u32 vcc, 0, {vr(vT+3)}
    v_lshl_or_b32 {vr(vInfo)}, {vr(vInfo)}, 14, {vr(vT+3)}
    s_nop 0
    v_mbcnt_lo_u32_b32 {vr(vT+5)}, vcc_lo, 0
    v_mbcnt_hi_u32_b32 {vr(vT+5)}, vcc_hi, {vr(vT+5)}
    v_and_b32 {vr(vT+5)}, {NW-1}, {vr(vT+5)}
    v_cmp_eq_u32 {sr(sMask,2)}, {sr(sW)}, {vr(vT+5)}
    s_nop 1
    s_and_b64 {sr(sMask,2)}, {sr(sMask,2)}, vcc
    s_bcnt1_i32_b64 {sr(sN)}, {sr(sMask,2)}
    """)
    stamp(2)

    def pop(slot):
        a(f"""
        s_ff1_i32_b64 {sr(sI)}, {sr(sMask,2)}
        s_bitset0_b64 {sr(sMask,2)}, {sr(sI)}
        v_readlane_b32 {sr(sMeta+slot)}, {vr(vInfo)}, {sr(sI)}
        s_cmp_lt_i32 {sr(sI)}, 0
        s_cselect_b32 {sr(sSrdK+2)}, 0, {sr(sSrdK+2)}
        s_and_b32 {sr(sOffs+slot)}, {sr(sMeta+slot)}, 0xffffc000
        """)

    def loadK(slot):
        for kk in range(4):
            a(f"buffer_load_dwordx4 {vr(vRing+32*slot+4*kk,4)}, {vr(vKoff)}, {sr(sSrdK,4)}, {sr(sOffs+slot)} offen offset:{64*kk} {kflags}")

    def loadV(slot):
        a(f"s_mov_b32 {sr(sSrdV+2)}, {sr(sSrdK+2)}")
        for i in range(4):
            a(f"buffer_load_dwordx4 {vr(vRing+32*slot+16+4*i,4)}, {vr(vVoff)}, {sr(sSrdV,4)}, {sr(sOffs+slot)} offen offset:{1024*i} {vflags}")

    for slot in range(D):
        pop(slot)
        loadK(slot)
        loadV(slot)
    a(f"""
    v_mov_b32 {vr(vT)}, {sr(sZ0)}
    v_mov_b32 {vr(vT+1)}, {sr(sZ1)}
    v_cmp_eq_u32 vcc, 8, {vr(vShift)}
    s_nop 1
    v_cndmask_b32 {vr(vT)}, {vr(vT)}, {vr(vT+1)}, vcc
    s_waitcnt vmcnt({8*D})
    """)
    for i in range(16):
        a(f"v_and_b32 {vr(vQ+i)}, {vr(vT)}, {vr(vQ+i)}")
    a(f"""
    s_cmp_eq_u32 {sr(sN)}, 0
    s_cbranch_scc1 L_done
    """)
    if stamps:
        a(f"s_waitcnt vmcnt({8*(D-1)+4})")
        stamp(3)
    a("L_loop:")
    for slot in range(D):
        K = vRing + 32 * slot
        V = K + 16
        a(f"s_waitcnt vmcnt({8*(D-1)+4})")
        if not nocompute:
            for kk in range(4):
                c = "0" if kk == 0 else vr(vS, 4)
                a(f"v_mfma_f32_16x16x32_bf16 {vr(vS,4)}, {vr(K+4*kk,4)}, {vr(vQ+4*kk,4)}, {c}")
            a(f"""
            v_bfe_u32 {vr(vLim)}, {sr(sMeta+slot)}, {vr(vShift)}, 5
            v_sub_u32 {vr(vLim)}, {vr(vLim)}, {vr(vG4)}
            """)
            for r in range(4):
                a(f"v_cmp_lt_i32 {sr(sM0+2*r,2)}, {r}, {vr(vLim)}")
        pop(slot)
        loadK(slot)
        if not nocompute:
            for r in range(4):
                a(f"v_cndmask_b32 {vr(vS+r)}, {vr(vNinf)}, {vr(vS+r)}, {sr(sM0+2*r,2)}")
            a(f"""
            v_max3_f32 {vr(vT)}, {vr(vS)}, {vr(vS+1)}, {vr(vS+2)}
            v_max3_f32 {vr(vT)}, {vr(vT)}, {vr(vS+3)}, {vr(vM)}
            v_mov_b32 {vr(vT+1)}, {vr(vT)}
            s_nop 1
            v_permlane16_swap_b32 {vr(vT)}, {vr(vT+1)}
            v_max_f32 {vr(vT)}, {vr(vT)}, {vr(vT+1)}
            v_mov_b32 {vr(vT+1)}, {vr(vT)}
            s_nop 1
            v_permlane32_swap_b32 {vr(vT)}, {vr(vT+1)}
            v_max_f32 {vr(vM)}, {vr(vT)}, {vr(vT+1)}
            v_mul_f32 {vr(vT)}, {sr(sScale)}, {vr(vM)}
            v_sub_f32 {vr(vAl)}, {vr(vMc)}, {vr(vT)}
            v_mov_b32 {vr(vMc)}, {vr(vT)}
            v_exp_f32 {vr(vAl)}, {vr(vAl)}
            """)
            for r in range(4):
                a(f"v_fma_f32 {vr(vS+r)}, {vr(vS+r)}, {sr(sScale)}, -{vr(vMc)}")
            for r in range(4):
                a(f"v_exp_f32 {vr(vS+r)}, {vr(vS+r)}")
            for i in range(16):
                a(f"v_pk_mul_f32 {vr(vAcc+2*i,2)}, {vr(vAcc+2*i,2)}, {vr(vAl,2)} op_sel_hi:[1,0]")
            a(f"""
            v_fma_f32 {vr(vLs)}, {vr(vLs)}, {vr(vAl)}, {vr(vS)}
            v_add_f32 {vr(vT)}, {vr(vS+1)}, {vr(vS+2)}
            v_add_f32 {vr(vLs)}, {vr(vLs)}, {vr(vS+3)}
            v_add_f32 {vr(vLs)}, {vr(vLs)}, {vr(vT)}
            v_cvt_pk_bf16_f32 {vr(vP)}, {vr(vS)}, {vr(vS+1)}
            v_cvt_pk_bf16_f32 {vr(vP+1)}, {vr(vS+2)}, {vr(vS+3)}
            """)
        a(f"s_waitcnt vmcnt({8*(D-1)+4})")
        if not nocompute:
            def perms(q):
                t = vA + 4 * (q & 1)
                a(f"""
                v_perm_b32 {vr(t)}, {vr(V+4+q)}, {vr(V+q)}, {sr(sPlo)}
                v_perm_b32 {vr(t+1)}, {vr(V+12+q)}, {vr(V+8+q)}, {sr(sPlo)}
                v_perm_b32 {vr(t+2)}, {vr(V+4+q)}, {vr(V+q)}, {sr(sPhi)}
                v_perm_b32 {vr(t+3)}, {vr(V+12+q)}, {vr(V+8+q)}, {sr(sPhi)}
                """)

            def mf(q):
                t = vA + 4 * (q & 1)
                for h in range(2):
                    n = 2 * q + h
                    a(f"v_mfma_f32_16x16x16_bf16 {vr(vAcc+4*n,4)}, {vr(t+2*h,2)}, {vr(vP,2)}, {vr(vAcc+4*n,4)}")
            perms(0)
            perms(1)
            mf(0)
            perms(2)
            mf(1)
            perms(3)
            mf(2)
            loadV(slot)
            mf(3)
        else:
            loadV(slot)
        a(f"""
        s_sub_u32 {sr(sN)}, {sr(sN)}, 1
        s_cmp_eq_u32 {sr(sN)}, 0
        """)
        if slot < D - 1:
            a("s_cbranch_scc1 L_done")
        else:
            a("s_cbranch_scc0 L_loop")
    a("L_done:")
    stamp(4)
    NSTR = 1088
    WSTR = NSTR * 8
    STATS = WSTR * NW
    vX = vA
    a(f"""
    v_mov_b32 {vr(vT+1)}, {vr(vLs)}
    s_mul_i32 {sr(sT)}, {sr(sW)}, {WSTR}
    s_lshl_b32 {sr(sT+1)}, {sr(sW)}, 9
    v_permlane16_swap_b32 {vr(vLs)}, {vr(vT+1)}
    v_add_f32 {vr(vLs)}, {vr(vLs)}, {vr(vT+1)}
    v_mov_b32 {vr(vT+1)}, {vr(vLs)}
    v_lshl_add_u32 {vr(vT+2)}, {vr(vL)}, 4, {sr(sT)}
    v_lshl_add_u32 {vr(vT+3)}, {vr(vL)}, 3, {sr(sT+1)}
    v_permlane32_swap_b32 {vr(vLs)}, {vr(vT+1)}
    v_add_f32 {vr(vT+5)}, {vr(vLs)}, {vr(vT+1)}
    v_mov_b32 {vr(vT+4)}, {vr(vMc)}
    ds_write_b64 {vr(vT+3)}, {vr(vT+4,2)} offset:{STATS}
    """)
    for n in range(8):
        a(f"ds_write_b128 {vr(vT+2)}, {vr(vAcc+4*n,4)} offset:{n*NSTR}")
    a(f"""
    v_lshrrev_b32 {vr(vT)}, 3, {vr(vL)}
    s_lshl_b32 {sr(sT)}, {sr(sW)}, 4
    v_add_u32 {vr(vT)}, {sr(sT)}, {vr(vT)}
    v_and_b32 {vr(vT+1)}, 7, {vr(vL)}
    v_mul_u32_u24 {vr(vT+2)}, {NSTR}, {vr(vT+1)}
    v_lshl_add_u32 {vr(vT+2)}, {vr(vT)}, 4, {vr(vT+2)}
    v_lshlrev_b32 {vr(vT+3)}, 3, {vr(vT)}
    s_lshl_b32 {sr(sT)}, {sr(sHead)}, 6
    v_add_u32 {vr(vT+4)}, {sr(sT)}, {vr(vT)}
    v_mul_u32_u24 {vr(vT+4)}, {MBOX}, {vr(vT+4)}
    s_lshl_b32 {sr(sT)}, {sr(sSlot)}, 7
    v_lshl_add_u32 {vr(vT+5)}, {vr(vT+1)}, 4, {sr(sT)}
    v_add_u32 {vr(vT+5)}, {vr(vT+5)}, {vr(vT+4)}
    v_add_u32 {vr(vT+6)}, {8*MBOX}, {vr(vT+5)}
    s_and_b32 {sr(sT)}, {sr(sSlot)}, 7
    s_lshl_b32 {sr(sT)}, {sr(sT)}, 6
    s_lshr_b32 {sr(sT+1)}, {sr(sSlot)}, 3
    s_lshl_b32 {sr(sT+1)}, {sr(sT+1)}, 3
    s_add_u32 {sr(sT)}, {sr(sT)}, {sr(sT+1)}
    s_add_u32 {sr(sT)}, {sr(sT)}, 8192
    v_add_u32 {vr(vT+7)}, {sr(sT)}, {vr(vT+4)}
    v_add_u32 {vr(vT+8)}, {8*MBOX}, {vr(vT+7)}
    v_cmp_eq_u32 {sr(sM0,2)}, 0, {vr(vT+1)}
    s_waitcnt vmcnt(0) lgkmcnt(0)
    s_barrier
    """)
    R = vRing
    for j in range(2):
        for w in range(NW):
            a(f"ds_read_b64 {vr(R+j*8+w*2,2)}, {vr(vT+3)} offset:{STATS + w*512 + j*64}")
    for j in range(2):
        for w in range(NW):
            a(f"ds_read_b128 {vr(R+16+j*16+w*4,4)}, {vr(vT+2)} offset:{w*WSTR + j*128}")
    a("s_waitcnt lgkmcnt(8)")
    for j in range(2):
        s = R + j * 8
        m = vS + 2 * j
        a(f"""
        v_max3_f32 {vr(m)}, {vr(s)}, {vr(s+2)}, {vr(s+4)}
        v_max_f32 {vr(m)}, {vr(m)}, {vr(s+6)}
        """)
        for w in range(NW):
            a(f"v_sub_f32 {vr(s+2*w)}, {vr(s+2*w)}, {vr(m)}")
        for w in range(NW):
            a(f"v_exp_f32 {vr(s+2*w)}, {vr(s+2*w)}")
        a("s_nop 0")
        a(f"v_mul_f32 {vr(m+1)}, {vr(s)}, {vr(s+1)}")
        for w in range(1, NW):
            a(f"v_fma_f32 {vr(m+1)}, {vr(s+2*w)}, {vr(s+2*w+1)}, {vr(m+1)}")
    for j in range(2):
        s = R + j * 8
        d = R + 16 + j * 16
        a(f"s_waitcnt lgkmcnt({4*(1-j)})")
        for e in range(4):
            a(f"v_mul_f32 {vr(d+e)}, {vr(s)}, {vr(d+e)}")
        for w in range(1, NW):
            for e in range(4):
                a(f"v_fma_f32 {vr(d+e)}, {vr(s+2*w)}, {vr(d+4*w+e)}, {vr(d+e)}")
        a(f"global_store_dwordx4 {vr(vT+5+j)}, {vr(d,4)}, {sr(sWs,2)} {stflags}")
    a(f"s_mov_b64 exec, {sr(sM0,2)}")
    for j in range(2):
        a(f"global_store_dwordx2 {vr(vT+7+j)}, {vr(vS+2*j,2)}, {sr(sWs,2)} {stflags}")
    if stamps:
        a("s_waitcnt vmcnt(0)")
        stamp(5)
        a(f"""
        s_mov_b64 exec, 1
        s_lshl_b32 {sr(sT)}, s2, 2
        s_add_u32 {sr(sT)}, {sr(sT)}, {sr(sW)}
        s_lshl_b32 {sr(sT)}, {sr(sT)}, 6
        s_add_u32 {sr(sT)}, {sr(sT)}, {STAMP_OFF}
        v_mov_b32 {vr(vT)}, {sr(sT)}
        s_getreg_b32 {sr(sT)}, hwreg(HW_REG_XCC_ID)
        s_getreg_b32 {sr(sT+1)}, hwreg(HW_REG_HW_ID)
        s_waitcnt lgkmcnt(0)
        """)
        for i in range(6):
            a(f"v_mov_b32 {vr(R+i)}, {sr(sStamp+2*i)}")
        a(f"v_mov_b32 {vr(R+6)}, {sr(sT)}")
        a(f"v_mov_b32 {vr(R+7)}, {sr(sT+1)}")
        a(f"global_store_dwordx4 {vr(vT)}, {vr(R,4)}, {sr(sWs,2)}")
        a(f"global_store_dwordx4 {vr(vT)}, {vr(R+4,4)}, {sr(sWs,2)} offset:16")
    a("L_end1:")
    a("s_endpgm")
    k1 = a.text()
    lds1 = STATS + NW * 512

    a = Asm()
    a(".p2align 8")
    a("combine_kernel:")
    if stamps:
        a("s_memrealtime s[20:21]")
    a(f"""
    s_cmp_ge_u32 s2, 256
    s_cbranch_scc1 L_end2
    s_load_dwordx2 s[4:5], s[0:1], 40
    s_load_dwordx2 s[6:7], s[0:1], 56
    s_mul_i32 s8, s2, {MBOX}
    v_lshl_add_u32 v1, v0, 4, s8
    v_lshrrev_b32 v2, 3, v0
    s_add_u32 s9, s8, 8192
    v_lshl_add_u32 v3, v2, 6, s9
    v_add_u32 v4, 4096, v1
    s_lshr_b32 s10, s2, 6
    s_lshl_b32 s10, s10, 11
    s_and_b32 s11, s2, 7
    s_lshl_b32 s11, s11, 8
    s_add_u32 s10, s10, s11
    s_and_b32 s11, s2, 8
    s_lshl_b32 s11, s11, 10
    s_add_u32 s10, s10, s11
    s_and_b32 s11, s2, 48
    s_lshl_b32 s11, s11, 2
    s_add_u32 s10, s10, s11
    v_lshl_add_u32 v5, v0, 1, s10
    s_waitcnt lgkmcnt(0)
    """)
    for i in range(4):
        a(f"global_load_dwordx4 v[{8+4*i}:{11+4*i}], v3, s[6:7] offset:{16*i}")
    for i in range(8):
        base = "v1" if i < 4 else "v4"
        a(f"global_load_dwordx4 v[{24+4*i}:{27+4*i}], {base}, s[6:7] offset:{1024*(i&3)}")
    a("""
    v_cmp_eq_u32 s[12:13], 1, v2
    v_cmp_eq_u32 s[14:15], 2, v2
    v_cmp_eq_u32 s[16:17], 3, v2
    s_waitcnt vmcnt(8)
    v_max3_f32 v6, v8, v10, v12
    v_max3_f32 v6, v6, v14, v16
    v_max3_f32 v6, v6, v18, v20
    v_max_f32 v6, v6, v22
    s_nop 1
    v_max_f32_dpp v6, v6, v6 row_ror:8 row_mask:0xf bank_mask:0xf
    v_mov_b32 v7, v6
    s_nop 1
    v_permlane16_swap_b32 v6, v7
    v_max_f32 v6, v6, v7
    v_mov_b32 v7, v6
    s_nop 1
    v_permlane32_swap_b32 v6, v7
    v_max_f32 v6, v6, v7
    """)
    for i in range(8):
        a(f"v_sub_f32 v{8+2*i}, v{8+2*i}, v6")
    for i in range(8):
        a(f"v_exp_f32 v{8+2*i}, v{8+2*i}")
    a("s_nop 0")
    a("v_mul_f32 v60, v8, v9")
    for i in range(1, 8):
        a(f"v_fma_f32 v60, v{8+2*i}, v{9+2*i}, v60")
    for i in range(8):
        a(f"s_waitcnt vmcnt({7-i})")
        for e in range(4):
            if i == 0:
                a(f"v_mul_f32 v{56+e}, v8, v{24+e}")
            else:
                a(f"v_fma_f32 v{56+e}, v{8+2*i}, v{24+4*i+e}, v{56+e}")
    a("s_nop 1")
    for e in range(5):
        a(f"v_add_f32_dpp v{56+e}, v{56+e}, v{56+e} row_ror:8 row_mask:0xf bank_mask:0xf")
    for op in ("v_permlane16_swap_b32", "v_permlane32_swap_b32"):
        for e in range(5):
            a(f"v_mov_b32 v{8+e}, v{56+e}")
        a("s_nop 1")
        for e in range(5):
            a(f"{op} v{56+e}, v{8+e}")
        for e in range(5):
            a(f"v_add_f32 v{56+e}, v{56+e}, v{8+e}")
    a("""
    v_rcp_f32 v60, v60
    v_cndmask_b32 v56, v56, v57, s[12:13]
    v_cndmask_b32 v56, v56, v58, s[14:15]
    v_cndmask_b32 v56, v56, v59, s[16:17]
    v_mul_f32 v56, v56, v60
    v_cvt_pk_bf16_f32 v56, v56, v56
    s_mov_b32 exec_hi, 0
    global_store_short v5, v56, s[4:5]
    """)
    if stamps:
        a(f"""
        s_waitcnt vmcnt(0)
        s_memrealtime s[22:23]
        s_mov_b64 exec, 1
        s_lshl_b32 s8, s2, 4
        s_add_u32 s8, s8, {STAMP_OFF + 65536}
        v_mov_b32 v1, s8
        s_waitcnt lgkmcnt(0)
        v_mov_b32 v2, s20
        v_mov_b32 v3, s22
        global_store_dwordx2 v1, v[2:3], s[6:7]
        """)
    a("L_end2:")
    a("s_endpgm")
    k2 = a.text()

    def kd(name, vg, sg):
        acc = (vg + 3) // 4 * 4
        return f""".p2align 6
.amdhsa_kernel {name}
  .amdhsa_next_free_vgpr {vg}
  .amdhsa_next_free_sgpr {sg}
  .amdhsa_accum_offset {acc}
  .amdhsa_group_segment_fixed_size 0
  .amdhsa_kernarg_size 64
  .amdhsa_user_sgpr_count 2
  .amdhsa_user_sgpr_kernarg_segment_ptr 1
  .amdhsa_system_sgpr_workgroup_id_x 1
.end_amdhsa_kernel
"""
    out = HEADER
    out += f"; @launch kernel={NAME}_kernel grid=(256,1,1) block=({64*NW},1,1) lds={lds1}\n"
    out += "; @launch kernel=combine_kernel grid=(256,1,1) block=(64,1,1) lds=0\n"
    out += f""".amdgcn_target "amdgcn-amd-amdhsa--gfx950"
.text
.globl {NAME}_kernel
.p2align 8
.type {NAME}_kernel,@function
"""
    out += k1
    out += ".globl combine_kernel\n.type combine_kernel,@function\n"
    out += k2
    out += '.section .rodata,"a"\n'
    out += kd(NAME + "_kernel", nv, 96)
    out += kd("combine_kernel", 64, 32)
    return out


if __name__ == "__main__":
    p = argparse.ArgumentParser()
    p.add_argument("-o", default="cdna_kernels/%s.s" % NAME)
    p.add_argument("-D", type=int, default=4)
    p.add_argument("--kflags", default="nt")
    p.add_argument("--vflags", default="nt")
    p.add_argument("--stflags", default="")
    p.add_argument("--stamps", action="store_true")
    p.add_argument("--nocompute", action="store_true")
    args = p.parse_args()
    open(args.o, "w").write(gen(D=args.D, kflags=args.kflags, vflags=args.vflags, stamps=args.stamps,
                                stflags=args.stflags, nocompute=args.nocompute))
```
